```python
import torch

def _softmax(x, axis=-1):
    return torch.softmax(x, dim=axis)

def _gelu(x):
    return torch.nn.functional.gelu(x, approximate='tanh')

def _silu(x):
    return torch.nn.functional.silu(x)

def _sigmoid(x):
    return torch.sigmoid(x)

def _layernorm(x, axis=-1, eps=1e-05):
    m = x.mean(dim=axis, keepdim=True)
    v = x.var(dim=axis, keepdim=True, unbiased=False)
    return (x - m) / torch.sqrt(v + eps)

def _scatter_add(tgt, idx, src, axis=0):
    return tgt.clone().index_add_(axis, idx, src)

def _segment_sum(src, seg, n):
    out = torch.zeros((n,) + src.shape[1:], dtype=src.dtype)
    return out.index_add_(0, seg, src)

def _pad(x, pw):
    flat = tuple((v for pair in reversed(pw) for v in pair))
    return torch.nn.functional.pad(x, flat)
kernel_name = 'recurrent_scan__memory_aug_recurrent_mem_tr__mixer_channel_mlp__prompt'

def setup_inputs():

    _w = lambda a: (lambda t: t.to(torch.bfloat16) if t.is_floating_point() else t)(torch.as_tensor(a))

    def _A_setup():
        B, S, Dm = (1, 2048, 640)
        H, Dh = (32, 192)
        M, seg = (8, 32)
        seg = min(seg, S)
        S = S // seg * seg
        return {'x': _w((lambda *s: torch.randn(*s, dtype=torch.bfloat16) * 0.05)(B, S, Dm)), 'mem0': _w((lambda *s: torch.randn(*s, dtype=torch.bfloat16) * 0.8)(B, M, Dm)), 'Wq': _w((lambda *s: torch.randn(*s, dtype=torch.bfloat16) * 0.8)(Dm, H, Dh) * Dm ** (-0.5)), 'Wk': _w((lambda *s: torch.randn(*s, dtype=torch.bfloat16) * 0.8)(Dm, H, Dh) * Dm ** (-0.5)), 'Wv': _w((lambda *s: torch.randn(*s, dtype=torch.bfloat16) * 0.8)(Dm, H, Dh) * Dm ** (-0.5)), 'Wo': _w((lambda *s: torch.randn(*s, dtype=torch.bfloat16) * 0.8)(H, Dh, Dm) * (H * Dh) ** (-0.5)), 'seg_len': seg}
    _A_in = _A_setup()

    def _B_setup():
        B, S, D, F = (1, 2048, 640, 1536)
        return {'x': _w((lambda *s: torch.randn(*s, dtype=torch.bfloat16) * 0.05)(B, S, D)), 'w1': _w((lambda *s: torch.randn(*s, dtype=torch.bfloat16) * 1.6)(D, F) * D ** (-0.5)), 'b1': _w((lambda *s: torch.randn(*s, dtype=torch.bfloat16) * 0.4)(F)), 'w2': _w((lambda *s: torch.randn(*s, dtype=torch.bfloat16) * 0.2)(F, D) * F ** (-0.5)), 'b2': _w((lambda *s: torch.randn(*s, dtype=torch.bfloat16) * 0.2)(D))}
    _B_in = _B_setup()
    return {'A_x': _A_in['x'], 'A_mem0': _A_in['mem0'], 'A_Wq': _A_in['Wq'], 'A_Wk': _A_in['Wk'], 'A_Wv': _A_in['Wv'], 'A_Wo': _A_in['Wo'], 'A_seg_len': _A_in['seg_len'], 'B_x': _B_in['x'], 'B_w1': _B_in['w1'], 'B_b1': _B_in['b1'], 'B_w2': _B_in['w2'], 'B_b2': _B_in['b2']}

def reference(A_x, A_mem0, A_Wq, A_Wk, A_Wv, A_Wo, A_seg_len, B_x, B_w1, B_b1, B_w2, B_b2):

    def _A_ref(x, mem0, Wq, Wk, Wv, Wo, seg_len):
        B, S, Dm = x.shape
        H, Dh = (Wq.shape[1], Wq.shape[2])
        M = mem0.shape[1]
        scale = Dh ** (-0.5)
        n_seg = S // seg_len
        L = M + seg_len
        idx = torch.arange(L)
        mask = (idx[:, None] < M) | (idx[:, None] >= idx[None, :])
        mem = mem0
        outs = []
        for s in range(n_seg):
            xs = x[:, s * seg_len:(s + 1) * seg_len, :].clone()
            h = torch.concatenate([mem, xs], axis=1)
            q = torch.einsum('btd,dhe->bhte', h, Wq)
            k = torch.einsum('btd,dhe->bhte', h, Wk)
            v = torch.einsum('btd,dhe->bhte', h, Wv)
            scores = torch.einsum('bhqe,bhke->bhqk', q, k) * scale
            scores = torch.where(mask[None, None], scores, -1000000000.0)
            p = _softmax(scores, axis=-1)
            o = torch.einsum('bhqk,bhke->bhqe', p, v)
            o = torch.einsum('bhte,hed->btd', o, Wo)
            mem = o[:, :M, :].clone()
            outs.append(o[:, M:, :])
        return torch.concatenate(outs, axis=1)

    def _B_ref(x, w1, b1, w2, b2):
        y = _layernorm(x, axis=-1)
        h = _gelu(torch.einsum('bsd,df->bsf', y, w1) + b1)
        return torch.einsum('bsf,fd->bsd', h, w2) + b2
    x = A_x
    xn = _layernorm(x, axis=-1)
    s = _A_ref(xn, A_mem0, A_Wq, A_Wk, A_Wv, A_Wo, A_seg_len)
    g = _silu(_B_ref(xn, B_w1, B_b1, B_w2, B_b2))
    return x + s * g
```

```python
import re

TRANS = ("v_exp_f32", "v_log_f32", "v_rcp_f32", "v_rsq_f32", "v_sqrt_f32", "v_sin_f32", "v_cos_f32")

_reg_re = re.compile(r"^(-?)(abs\()?([vas])(\d+)\)?$")
_rng_re = re.compile(r"^([vas])\[(\d+):(\d+)\]$")


def regs_of(tok):
    tok = tok.strip()
    if tok in ("vcc", "vcc_lo", "vcc_hi"):
        return {("s", "vcc")}
    if tok in ("exec", "exec_lo", "exec_hi"):
        return {("s", "exec")}
    if tok == "m0":
        return {("s", "m0")}
    m = _rng_re.match(tok)
    if m:
        return {(m.group(1), i) for i in range(int(m.group(2)), int(m.group(3)) + 1)}
    m = _reg_re.match(tok)
    if m:
        return {(m.group(3), int(m.group(4)))}
    return set()


class Ins:
    __slots__ = ("text", "name", "kind", "dst", "src", "srcA", "srcC", "dpp", "passes", "wide_data", "states", "lds_dma")

    def __init__(self, text):
        self.text = text
        body = text.split(";")[0].strip()
        parts = body.split(None, 1)
        self.name = name = parts[0]
        rest = parts[1] if len(parts) > 1 else ""
        ops, cur, depth = [], "", 0
        for ch in rest:
            if ch == "[":
                depth += 1
            if ch == "]":
                depth -= 1
            if ch == "," and depth == 0:
                ops.append(cur.strip())
                cur = ""
            else:
                cur += ch
        mods = ""
        if cur.strip():
            last = cur.strip().split(None, 1)
            ops.append(last[0])
            mods = last[1] if len(last) > 1 else ""
        self.dst, self.src = set(), set()
        self.srcA, self.srcC = set(), set()
        self.dpp = ("_dpp" in name) or ("quad_perm" in mods) or ("row_" in mods)
        self.passes = 0
        self.wide_data = set()
        self.states = 1
        self.lds_dma = False
        R = [regs_of(o) for o in ops]
        allr = set().union(*R) if R else set()
        if name == "s_nop":
            self.kind = "nop"
            self.states = int(ops[0], 0) + 1
        elif name.startswith("v_mfma") or name.startswith("v_smfmac"):
            self.kind = "mfma"
            self.passes = 8 if "32x32" in name else 4
            self.dst = R[0]
            if name.startswith("v_smfmac"):
                self.srcA = R[1] | R[2] | R[3]
                self.srcC = R[0]
            else:
                self.srcA = R[1] | R[2]
                self.srcC = R[3]
            self.src = self.srcA | self.srcC
        elif name.startswith("v_"):
            self.kind = "valu"
            if name.startswith("v_permlane") and "swap" in name or name.startswith("v_swap"):
                self.dst = R[0] | R[1]
                self.src = R[0] | R[1]
            else:
                self.dst = set(R[0])
                k = 1
                if "_co_" in name:
                    self.dst |= R[1]
                    k = 2
                for r in R[k:]:
                    self.src |= r
                if name.startswith("v_fmac") or name.startswith("v_pk_fmac") or "dpp" in name or self.dpp:
                    self.src |= R[0]
                if name.startswith("v_cndmask") and len(ops) == 3:
                    self.src |= {("s", "vcc")}
        elif name.startswith("ds_"):
            self.kind = "ds"
            if name.startswith("ds_write") or name.startswith("ds_add"):
                self.src = allr
            else:
                self.dst = R[0]
                for r in R[1:]:
                    self.src |= r
        elif name.startswith("buffer_") or name.startswith("global_"):
            self.kind = "vmem"
            if " lds" in (" " + mods) and "load" in name:
                self.src = allr | {("s", "m0")}
                self.lds_dma = True
            elif "load" in name:
                self.dst = R[0]
                for r in R[1:]:
                    self.src |= r
            else:
                self.src = allr
                if "atomic" in name and "sc0" in mods:
                    self.dst = R[0]
                if "x4" in name or "x3" in name:
                    self.wide_data = R[0] if name.startswith("buffer_") else R[1]
        elif name.startswith("s_"):
            self.kind = "salu"
            if name.startswith(("s_cmp", "s_bitcmp", "s_waitcnt", "s_barrier", "s_branch", "s_cbranch", "s_endpgm", "s_sleep", "s_setprio")):
                self.src = allr
            else:
                self.dst = R[0] if R else set()
                for r in R[1:]:
                    self.src |= r
                if "saveexec" in name:
                    self.dst |= {("s", "exec")}
        else:
            raise ValueError("unknown instruction: " + text)


def need_between(p, c):
    n = 0
    vec = lambda s: {r for r in s if r[0] in "va"}
    sca = lambda s: {r for r in s if r[0] == "s"}
    if p.kind == "valu":
        pv = vec(p.dst)
        ps = sca(p.dst)
        if c.kind == "mfma" and pv & c.src:
            n = max(n, 2)
        if c.kind == "valu":
            if pv & c.src:
                if c.dpp or c.name.startswith("v_permlane"):
                    n = max(n, 2)
                if c.name.startswith(("v_readlane", "v_readfirstlane")):
                    n = max(n, 1)
                if p.name.startswith(TRANS) and not c.name.startswith(TRANS):
                    n = max(n, 1)
            if ps & c.src:
                n = max(n, 4 if c.name.startswith(("v_readlane", "v_writelane")) else 2)
        if c.kind == "vmem" and ps & c.src:
            n = max(n, 5)
        if c.kind == "salu" and ps & c.src:
            n = max(n, 1)
        if c.kind in ("vmem", "ds") and p.name.startswith(TRANS) and pv & c.src:
            n = max(n, 1)
    if p.kind == "mfma":
        big = 12 if p.passes == 8 else 8
        if c.kind == "mfma":
            if p.dst & c.srcA:
                n = max(n, big)
            if p.dst & c.srcC:
                if not (p.dst == c.srcC and p.passes == c.passes):
                    n = max(n, big - 2)
            elif p.dst & c.dst:
                n = max(n, big)
        elif c.kind in ("valu", "vmem", "ds"):
            if p.dst & (c.src | c.dst):
                n = max(n, big)
        if c.kind == "valu" and p.srcC & c.dst:
            n = max(n, 7 if p.passes == 8 else 3)
    if p.kind == "salu" and ("s", "m0") in p.dst and c.kind == "vmem" and c.lds_dma:
        n = max(n, 1)
    if p.kind == "vmem" and p.wide_data:
        if p.wide_data & c.dst:
            n = max(n, 2 if c.kind == "valu" else 1)
    return n


def max_pending(p):
    if p.kind == "mfma":
        return 12 if p.passes == 8 else 8
    if p.kind == "valu":
        return 5 if any(r[0] == "s" for r in p.dst) else 2
    if p.kind == "salu" and ("s", "m0") in p.dst:
        return 1
    if p.kind == "vmem" and p.wide_data:
        return 2
    return 0


class Prog:
    def __init__(self):
        self.lines = []
        self.hist = []
        self.uid = 0
        self.nins = 0

    def raw(self, text):
        self.lines.append(text)

    def comment(self, text):
        self.lines.append("    ; " + text)

    def _push(self, ins):
        self.lines.append("    " + ins.text)
        self.hist.append(ins)
        self.nins += 1
        if len(self.hist) > 16:
            self.hist.pop(0)

    def _nops(self, n):
        while n > 0:
            k = min(n, 16)
            self._push(Ins("s_nop %d" % (k - 1)))
            n -= k

    def I(self, text):
        ins = Ins(text)
        dist = 0
        need = 0
        for p in reversed(self.hist):
            if dist >= 12:
                break
            r = need_between(p, ins)
            if r > dist:
                need = max(need, r - dist)
            dist += p.states
        if need:
            self._nops(need)
        self._push(ins)
        return ins

    def __call__(self, text, *args):
        for line in text.split("\n"):
            line = line.strip()
            if line:
                self.I(line)

    def flush(self, credit=0):
        dist = credit
        need = 0
        for p in reversed(self.hist):
            if dist >= 12:
                break
            r = max_pending(p)
            if r > dist:
                need = max(need, r - dist)
            dist += p.states
        if need:
            self._nops(need)

    def label(self, name, flush=True):
        if flush:
            self.flush()
        self.lines.append(name + ":")
        if flush:
            self.hist = []

    def branch(self, text, flush=True):
        if flush:
            self.flush(credit=1)
        self.I(text)

    def newlabel(self, stem="L"):
        self.uid += 1
        return "%s_%d" % (stem, self.uid)

    def text(self):
        return "\n".join(self.lines) + "\n"


def vr(b, n=1):
    return "v%d" % b if n == 1 else "v[%d:%d]" % (b, b + n - 1)


def ar(b, n=1):
    return "a%d" % b if n == 1 else "a[%d:%d]" % (b, b + n - 1)


def sr(b, n=1):
    return "s%d" % b if n == 1 else "s[%d:%d]" % (b, b + n - 1)


def ur(b, n=1):
    if b < 256:
        assert b + n <= 256
        return vr(b, n)
    return ar(b - 256, n)


def skipblock(p, branch, instrs):
    lab = p.newlabel("Lskip")
    p.I("%s %s" % (branch, lab))
    saved = list(p.hist)
    for t in instrs:
        p.I(t)
    inner = [i for i in p.hist if i not in saved]
    p.lines.append(lab + ":")
    for i in inner:
        i.states = 0
    p.hist = (saved + inner)[-24:]
```

```python
from asmlib import *
import spec as sp

def kbegin(p, name):
    p.raw(".p2align 8")
    p.raw(".globl %s" % name)
    p.raw(".type %s,@function" % name)
    p.raw("%s:" % name)
    p.hist = []

def kdesc(name, nvgpr, nagpr=0, nsgpr=102):
    acc = max(4, (nvgpr + 3) // 4 * 4)
    tot = acc + nagpr if nagpr else nvgpr
    return """.p2align 6
.amdhsa_kernel %s
  .amdhsa_next_free_vgpr %d
  .amdhsa_next_free_sgpr %d
  .amdhsa_accum_offset %d
  .amdhsa_group_segment_fixed_size 0
  .amdhsa_kernarg_size 120
  .amdhsa_user_sgpr_count 2
  .amdhsa_user_sgpr_kernarg_segment_ptr 1
  .amdhsa_system_sgpr_workgroup_id_x 1
  .amdhsa_float_denorm_mode_32 3
.end_amdhsa_kernel
""" % (name, tot, nsgpr, acc)

def load_srds(p, items):
    for name, b in items:
        p("s_load_dwordx2 s[%d:%d], s[0:1], %d" % (b, b + 1, sp.KA[name]))
    p("s_waitcnt lgkmcnt(0)")
    for name, b in items:
        p("s_and_b32 s%d, s%d, 0xffff" % (b + 1, b + 1))
        p("s_mov_b32 s%d, 0x%x" % (b + 2, sp.NBYTES[name]))
        p("s_mov_b32 s%d, 0x00020000" % (b + 3))

def fhex(x):
    import struct
    return "0x%08x" % struct.unpack("<I", struct.pack("<f", x))[0]
```

```python
from gen_common import *

NLN = 128
NPOIS = 130
def gen_prep(p):
    name = "prep_kernel"
    kbegin(p, name)
    p("s_cmp_ge_u32 s2, %d" % (NLN + NPOIS))
    p.branch("s_cbranch_scc1 prep_done")
    X, M0, WS = 12, 16, 20
    load_srds(p, [("x", X), ("mem0", M0), ("ws", WS)])
    p("s_cmp_ge_u32 s2, %d" % NLN)
    p.branch("s_cbranch_scc1 prep_poison")
    p("v_and_b32 v1, 63, v0")
    p("v_lshrrev_b32 v2, 6, v0")
    p("v_and_b32 v3, 15, v1")
    p("v_lshrrev_b32 v4, 4, v1")
    p("s_lshl_b32 s3, s2, 4")
    p("v_add_u32 v5, s3, v3")
    p("v_mul_u32_u24 v5, 1280, v5")
    p("v_mul_u32_u24 v6, 320, v2")
    p("v_add_u32 v5, v5, v6")
    p("v_lshl_add_u32 v5, v4, 3, v5")
    RAW, FL = 8, 32
    for k in range(5):
        p("buffer_load_dwordx2 v[%d:%d], v5, s[%d:%d], 0 offen offset:%d" % (RAW + 4 * k, RAW + 4 * k + 1, X, X + 3, k * 64))
        p("buffer_load_dwordx2 v[%d:%d], v5, s[%d:%d], 0 offen offset:%d" % (RAW + 4 * k + 2, RAW + 4 * k + 3, X, X + 3, k * 64 + 32))
    p("v_lshlrev_b32 v7, 6, v3")
    p("v_lshl_add_u32 v6, v2, 2, v4")
    p("v_lshl_add_u32 v6, v6, 2, v7")
    p("s_mul_i32 s3, s2, %d" % (20 * 1024))
    p("v_mul_u32_u24 v28, %d, v2" % (5 * 1024))
    p("v_lshl_add_u32 v28, v1, 4, v28")
    p("v_add_u32 v28, s3, v28")
    p("s_waitcnt vmcnt(0)")
    def unpack():
        for i in range(20):
            p("v_lshlrev_b32 v%d, 16, v%d" % (FL + 2 * i, RAW + i))
            p("v_and_b32 v%d, 0xffff0000, v%d" % (FL + 2 * i + 1, RAW + i))
    T = 72
    def reduce(src, region):
        p("ds_write_b32 v6, v%d offset:%d" % (src, region * 1024))
        p("s_waitcnt lgkmcnt(0)")
        p("s_barrier")
        for q in range(4):
            p("ds_read_b128 v[%d:%d], v7 offset:%d" % (T + 4 + 4 * q, T + 7 + 4 * q, region * 1024 + q * 16))
        p("s_waitcnt lgkmcnt(0)")
        b = T + 4
        for st in (8, 4, 2, 1):
            for i in range(st):
                p("v_add_f32 v%d, v%d, v%d" % (b + i, b + i, b + i + st))
        p("v_mul_f32 v%d, %s, v%d" % (src, fhex(1.0 / 640), b))
    def layernorm(region):
        for a in range(4):
            p("v_add_f32 v%d, v%d, v%d" % (T + a, FL + a, FL + 4 + a))
        for i in range(8, 40):
            p("v_add_f32 v%d, v%d, v%d" % (T + i % 4, T + i % 4, FL + i))
        p("v_add_f32 v%d, v%d, v%d" % (T, T, T + 1))
        p("v_add_f32 v%d, v%d, v%d" % (T + 2, T + 2, T + 3))
        p("v_add_f32 v%d, v%d, v%d" % (T, T, T + 2))
        reduce(T, region)
        p("v_mov_b32 v29, v%d" % T)
        for a in range(4):
            p("v_mov_b32 v%d, 0" % (T + a))
        for i in range(40):
            p("v_sub_f32 v30, v%d, v29" % (FL + i))
            p("v_fmac_f32 v%d, v30, v30" % (T + i % 4))
        p("v_add_f32 v%d, v%d, v%d" % (T, T, T + 1))
        p("v_add_f32 v%d, v%d, v%d" % (T + 2, T + 2, T + 3))
        p("v_add_f32 v%d, v%d, v%d" % (T, T, T + 2))
        reduce(T, region + 1)
        p("v_cvt_pk_bf16_f32 v30, v29, v%d" % T)
        p("v_lshlrev_b32 v29, 16, v30")
        p("v_and_b32 v30, 0xffff0000, v30")
        p("v_add_f32 v30, %s, v30" % fhex(1e-5))
        p("v_cvt_pk_bf16_f32 v30, v30, v30")
        p("v_and_b32 v30, 0xffff0000, v30")
        p("v_sqrt_f32 v30, v30")
        p("v_cvt_pk_bf16_f32 v30, v30, v30")
        p("v_and_b32 v30, 0xffff0000, v30")
        p("v_rcp_f32 v31, v30")
        p("v_fma_f32 v30, -v30, v31, 2.0")
        p("v_mul_f32 v31, v31, v30")
        for i in range(20):
            a, b = FL + 2 * i, FL + 2 * i + 1
            p("v_sub_f32 v%d, v%d, v29" % (a, a))
            p("v_sub_f32 v%d, v%d, v29" % (b, b))
            p("v_cvt_pk_bf16_f32 v30, v%d, v%d" % (a, b))
            p("v_lshlrev_b32 v%d, 16, v30" % a)
            p("v_and_b32 v%d, 0xffff0000, v30" % b)
            p("v_mul_f32 v%d, v%d, v31" % (a, a))
            p("v_mul_f32 v%d, v%d, v31" % (b, b))
            p("v_cvt_pk_bf16_f32 v%d, v%d, v%d" % (RAW + i, a, b))
    unpack()
    layernorm(0)
    p("s_mov_b32 s3, 0x%x" % sp.XNF)
    for k in range(5):
        p("buffer_store_dwordx4 v[%d:%d], v28, s[%d:%d], s3 offen offset:%d" % (RAW + 4 * k, RAW + 4 * k + 3, WS, WS + 3, k * 1024) if k < 4 else
          "buffer_store_dwordx4 v[%d:%d], v28, s[%d:%d], s4 offen" % (RAW + 4 * k, RAW + 4 * k + 3, WS, WS + 3)) if k < 4 else None
    p("s_mov_b32 s4, 0x%x" % (sp.XNF + 4096))
    p("buffer_store_dwordx4 v[%d:%d], v28, s[%d:%d], s4 offen" % (RAW + 16, RAW + 19, WS, WS + 3))
    unpack()
    p("s_nop 1")
    layernorm(2)
    p("s_mov_b32 s3, 0x%x" % sp.YNF)
    p("s_mov_b32 s4, 0x%x" % (sp.YNF + 4096))
    for k in range(4):
        p("buffer_store_dwordx4 v[%d:%d], v28, s[%d:%d], s3 offen offset:%d" % (RAW + 4 * k, RAW + 4 * k + 3, WS, WS + 3, k * 1024))
    p("buffer_store_dwordx4 v[%d:%d], v28, s[%d:%d], s4 offen" % (RAW + 16, RAW + 19, WS, WS + 3))
    p("s_endpgm")
    p.label("prep_poison")
    p("s_sub_u32 s3, s2, %d" % NLN)
    p("s_lshl_b32 s4, s3, 17")
    p("s_add_u32 s4, s4, 0x%x" % sp.HAND)
    p("v_lshlrev_b32 v1, 4, v0")
    for i in range(4):
        p("v_mov_b32 v%d, -1" % (4 + i))
    for blk in range(32):
        p("buffer_store_dwordx4 v[4:7], v1, s[%d:%d], s4 offen" % (WS, WS + 3))
        p("s_add_u32 s4, s4, 4096")
    p("s_cmp_ge_u32 s3, 2")
    p.branch("s_cbranch_scc1 prep_done")
    p("s_waitcnt vmcnt(0)")
    p("s_barrier")
    p("s_lshl_b32 s4, s3, 17")
    p("s_add_u32 s4, s4, 0x%x" % sp.HAND)
    for part in range(3):
        p("v_add_u32 v2, %d, v0" % (part * 256))
        p("v_and_b32 v3, 7, v2")
        p("v_lshrrev_b32 v8, 3, v2")
        p("v_mul_u32_u24 v3, 1280, v3")
        p("v_lshl_add_u32 v3, v8, 4, v3")
        if part == 2:
            p("v_cmp_gt_u32 vcc, 128, v0")
            p("v_mov_b32 v9, 0x7fffffff")
            p("v_cndmask_b32 v3, v9, v3, vcc")
            p("v_add_u32 v10, 0x%x, v1" % sp.BLK)
            p("v_mov_b32 v9, 0x7ff00000")
            p("v_cndmask_b32 v10, v9, v10, vcc")
        else:
            p("v_add_u32 v10, %d, v1" % (part * 4096))
        p("buffer_load_dwordx4 v[12:15], v3, s[%d:%d], 0 offen" % (M0, M0 + 3))
        p("s_waitcnt vmcnt(0)")
        for i in range(4):
            p("v_min_u32 v%d, 0xfffffffe, v%d" % (12 + i, 12 + i))
        for sl in range(2):
            for par in range(2):
                p("s_add_u32 s5, s4, 0x%x" % (sl * sp.SLOT + par * 8192))
                p("buffer_store_dwordx4 v[12:15], v10, s[%d:%d], s5 offen" % (WS, WS + 3))
        p("s_nop 1")
    p.label("prep_done")
    p("s_endpgm")
    return name, (NLN + NPOIS, 256, 4096), kdesc(name, 96)
```

```python
S, D, H, E, F, M, SEG, NSEG = 2048, 640, 32, 192, 1536, 8, 32, 64
XNF = 0x0000000
YNF = 0x0280000
GF  = 0x0500000
HF  = 0x0800000
QF  = 0x1000000
KF  = 0x2800000
VOXF = 0x4000000
VOMF = 0x9000000
KMF = 0xAA00000
UMF = 0xB600000
PXF = 0xCA00000
HAND = 0xD000000
CTRL = 0xE200000
WS_BYTES = 0x10000000
NREP = 4
SLOT = 0x10000
BLK = 0x4000
PM_OFF = BLK + 2048
PX_OFF = 2 * BLK
KA = dict(x=0, mem0=8, Wq=16, Wk=24, Wv=32, Wo=40, seglen=48, Bx=56, w1=64, b1=72, w2=80, b2=88, out=96, dbg=104, ws=112)
NBYTES = dict(x=S*D*2, mem0=M*D*2, Wq=D*H*E*2, Wk=D*H*E*2, Wv=D*H*E*2, Wo=H*E*D*2, w1=D*F*2, b1=F*2, w2=F*D*2, b2=D*2, out=S*D*2, dbg=256, ws=WS_BYTES)
```

```python
import sys
sys.path.insert(0, "gen")
from gen_common import *
import gen_prep
HEADER = open("recurrent_scan__memory_aug_recurrent_mem_tr__mixer_channel_mlp__prompt.s.ref").read().split("; Override launch")[0]

def build(which):
    p = Prog()
    launches, descs = [], []
    for fn in which:
        r = fn(p)
        if isinstance(r, tuple): r = [r]
        for name, (g, b, lds), d in r:
            launches.append("; @launch kernel=%s grid=(%d,1,1) block=(%d,1,1) lds=%d" % (name, g, b, lds))
            if d: descs.append(d)
    out = HEADER + "\n".join(launches) + "\n"
    out += '.amdgcn_target "amdgcn-amd-amdhsa--gfx950"\n.text\n' + p.text()
    out += '.section .rodata,"a"\n' + "".join(descs)
    return out, p.nins

if __name__ == "__main__":
    import importlib
    mods = sys.argv[2:]
    fns = []
    for m in mods:
        mod, fn = m.split(".")
        fns.append(getattr(importlib.import_module(mod), fn))
    txt, n = build(fns)
    open(sys.argv[1], "w").write(txt)
    print("wrote", sys.argv[1], "instructions:", n, "bytes:", len(txt))
```

```python
import re

TRANS = ("v_exp_f32", "v_log_f32", "v_rcp_f32", "v_rsq_f32", "v_sqrt_f32", "v_sin_f32", "v_cos_f32")

_reg_re = re.compile(r"^(-?)(abs\()?([vas])(\d+)\)?$")
_rng_re = re.compile(r"^([vas])\[(\d+):(\d+)\]$")


def regs_of(tok):
    tok = tok.strip()
    if tok in ("vcc", "vcc_lo", "vcc_hi"):
        return {("s", "vcc")}
    if tok in ("exec", "exec_lo", "exec_hi"):
        return {("s", "exec")}
    if tok == "m0":
        return {("s", "m0")}
    m = _rng_re.match(tok)
    if m:
        return {(m.group(1), i) for i in range(int(m.group(2)), int(m.group(3)) + 1)}
    m = _reg_re.match(tok)
    if m:
        return {(m.group(3), int(m.group(4)))}
    return set()


class Ins:
    __slots__ = ("text", "name", "kind", "dst", "src", "srcA", "srcC", "dpp", "passes", "wide_data", "states", "lds_dma")

    def __init__(self, text):
        self.text = text
        body = text.split(";")[0].strip()
        parts = body.split(None, 1)
        self.name = name = parts[0]
        rest = parts[1] if len(parts) > 1 else ""
        ops, cur, depth = [], "", 0
        for ch in rest:
            if ch == "[":
                depth += 1
            if ch == "]":
                depth -= 1
            if ch == "," and depth == 0:
                ops.append(cur.strip())
                cur = ""
            else:
                cur += ch
        mods = ""
        if cur.strip():
            last = cur.strip().split(None, 1)
            ops.append(last[0])
            mods = last[1] if len(last) > 1 else ""
        self.dst, self.src = set(), set()
        self.srcA, self.srcC = set(), set()
        self.dpp = ("_dpp" in name) or ("quad_perm" in mods) or ("row_" in mods)
        self.passes = 0
        self.wide_data = set()
        self.states = 1
        self.lds_dma = False
        R = [regs_of(o) for o in ops]
        allr = set().union(*R) if R else set()
        if name == "s_nop":
            self.kind = "nop"
            self.states = int(ops[0], 0) + 1
        elif name.startswith("v_mfma") or name.startswith("v_smfmac"):
            self.kind = "mfma"
            self.passes = 8 if "32x32" in name else 4
            self.dst = R[0]
            if name.startswith("v_smfmac"):
                self.srcA = R[1] | R[2] | R[3]
                self.srcC = R[0]
            else:
                self.srcA = R[1] | R[2]
                self.srcC = R[3]
            self.src = self.srcA | self.srcC
        elif name.startswith("v_"):
            self.kind = "valu"
            if name.startswith("v_permlane") and "swap" in name or name.startswith("v_swap"):
                self.dst = R[0] | R[1]
                self.src = R[0] | R[1]
            else:
                self.dst = set(R[0])
                k = 1
                if "_co_" in name:
                    self.dst |= R[1]
                    k = 2
                for r in R[k:]:
                    self.src |= r
                if name.startswith("v_fmac") or name.startswith("v_pk_fmac") or "dpp" in name or self.dpp:
                    self.src |= R[0]
                if name.startswith("v_cndmask") and len(ops) == 3:
                    self.src |= {("s", "vcc")}
        elif name.startswith("ds_"):
            self.kind = "ds"
            if name.startswith("ds_write") or name.startswith("ds_add"):
                self.src = allr
            else:
                self.dst = R[0]
                for r in R[1:]:
                    self.src |= r
        elif name.startswith("buffer_") or name.startswith("global_"):
            self.kind = "vmem"
            if " lds" in (" " + mods) and "load" in name:
                self.src = allr | {("s", "m0")}
                self.lds_dma = True
            elif "load" in name:
                self.dst = R[0]
                for r in R[1:]:
                    self.src |= r
            else:
                self.src = allr
                if "atomic" in name and "sc0" in mods:
                    self.dst = R[0]
                if "x4" in name or "x3" in name:
                    self.wide_data = R[0] if name.startswith("buffer_") else R[1]
        elif name.startswith("s_"):
            self.kind = "salu"
            if name.startswith(("s_cmp", "s_bitcmp", "s_waitcnt", "s_barrier", "s_branch", "s_cbranch", "s_endpgm", "s_sleep", "s_setprio")):
                self.src = allr
            else:
                self.dst = R[0] if R else set()
                for r in R[1:]:
                    self.src |= r
                if "saveexec" in name:
                    self.dst |= {("s", "exec")}
        else:
            raise ValueError("unknown instruction: " + text)


def need_between(p, c):
    n = 0
    vec = lambda s: {r for r in s if r[0] in "va"}
    sca = lambda s: {r for r in s if r[0] == "s"}
    if p.kind == "valu":
        pv = vec(p.dst)
        ps = sca(p.dst)
        if c.kind == "mfma" and pv & c.src:
            n = max(n, 2)
        if c.kind == "valu":
            if pv & c.src:
                if c.dpp or c.name.startswith("v_permlane"):
                    n = max(n, 2)
                if c.name.startswith(("v_readlane", "v_readfirstlane")):
                    n = max(n, 1)
                if p.name.startswith(TRANS) and not c.name.startswith(TRANS):
                    n = max(n, 1)
            if ps & c.src:
                n = max(n, 4 if c.name.startswith(("v_readlane", "v_writelane")) else 2)
        if c.kind == "vmem" and ps & c.src:
            n = max(n, 5)
        if c.kind == "salu" and ps & c.src:
            n = max(n, 1)
        if c.kind in ("vmem", "ds") and p.name.startswith(TRANS) and pv & c.src:
            n = max(n, 1)
    if p.kind == "mfma":
        big = 12 if p.passes == 8 else 8
        if c.kind == "mfma":
            if p.dst & c.srcA:
                n = max(n, big)
            if p.dst & c.srcC:
                if not (p.dst == c.srcC and p.passes == c.passes):
                    n = max(n, big - 2)
            elif p.dst & c.dst:
                n = max(n, big)
        elif c.kind in ("valu", "vmem", "ds"):
            if p.dst & (c.src | c.dst):
                n = max(n, big)
        if c.kind == "valu" and p.srcC & c.dst:
            n = max(n, 7 if p.passes == 8 else 3)
    if p.kind == "salu" and ("s", "m0") in p.dst and c.kind == "vmem" and c.lds_dma:
        n = max(n, 1)
    if p.kind == "vmem" and p.wide_data:
        if p.wide_data & c.dst:
            n = max(n, 2 if c.kind == "valu" else 1)
    return n


def max_pending(p):
    if p.kind == "mfma":
        return 12 if p.passes == 8 else 8
    if p.kind == "valu":
        return 5 if any(r[0] == "s" for r in p.dst) else 2
    if p.kind == "salu" and ("s", "m0") in p.dst:
        return 1
    if p.kind == "vmem" and p.wide_data:
        return 2
    return 0


class Prog:
    def __init__(self):
        self.lines = []
        self.hist = []
        self.uid = 0
        self.nins = 0

    def raw(self, text):
        self.lines.append(text)

    def comment(self, text):
        self.lines.append("    ; " + text)

    def _push(self, ins):
        self.lines.append("    " + ins.text)
        self.hist.append(ins)
        self.nins += 1
        if len(self.hist) > 16:
            self.hist.pop(0)

    def _nops(self, n):
        while n > 0:
            k = min(n, 16)
            self._push(Ins("s_nop %d" % (k - 1)))
            n -= k

    def I(self, text):
        ins = Ins(text)
        dist = 0
        need = 0
        for p in reversed(self.hist):
            if dist >= 12:
                break
            r = need_between(p, ins)
            if r > dist:
                need = max(need, r - dist)
            dist += p.states
        if need:
            self._nops(need)
        self._push(ins)
        return ins

    def __call__(self, text, *args):
        for line in text.split("\n"):
            line = line.strip()
            if line:
                self.I(line)

    def flush(self, credit=0):
        dist = credit
        need = 0
        for p in reversed(self.hist):
            if dist >= 12:
                break
            r = max_pending(p)
            if r > dist:
                need = max(need, r - dist)
            dist += p.states
        if need:
            self._nops(need)

    def label(self, name, flush=True):
        if flush:
            self.flush()
        self.lines.append(name + ":")
        if flush:
            self.hist = []

    def branch(self, text, flush=True):
        if flush:
            self.flush(credit=1)
        self.I(text)

    def newlabel(self, stem="L"):
        self.uid += 1
        return "%s_%d" % (stem, self.uid)

    def text(self):
        return "\n".join(self.lines) + "\n"


def vr(b, n=1):
    return "v%d" % b if n == 1 else "v[%d:%d]" % (b, b + n - 1)


def ar(b, n=1):
    return "a%d" % b if n == 1 else "a[%d:%d]" % (b, b + n - 1)


def sr(b, n=1):
    return "s%d" % b if n == 1 else "s[%d:%d]" % (b, b + n - 1)


def ur(b, n=1):
    if b < 256:
        assert b + n <= 256
        return vr(b, n)
    return ar(b - 256, n)


def skipblock(p, branch, instrs):
    lab = p.newlabel("Lskip")
    p.I("%s %s" % (branch, lab))
    saved = list(p.hist)
    for t in instrs:
        p.I(t)
    inner = [i for i in p.hist if i not in saved]
    p.lines.append(lab + ":")
    for i in inner:
        i.states = 0
    p.hist = (saved + inner)[-24:]


class Gap:
    def __init__(self, p, maxv=2):
        self.p = p
        self.q = []
        self.maxv = maxv

    def add(self, *items):
        self.q.extend(items)

    def fill(self, slots=2, had_valu=0):
        nv = had_valu
        while slots > 0 and self.q:
            it = self.q[0]
            if callable(it):
                self.q.pop(0)
                it()
                slots -= 2
                continue
            k = Ins(it).kind
            if k == "valu":
                if nv >= self.maxv:
                    return
                nv += 1
            elif k in ("ds", "vmem") and nv:
                return
            self.q.pop(0)
            self.p(it)
            slots -= 1

    def drain(self):
        while self.q:
            it = self.q.pop(0)
            if callable(it):
                it()
            else:
                self.p(it)


class DSQ:
    def __init__(self, p):
        self.p = p
        self.n = 0
        self.done = 0
        self.pos = {}

    def issue(self, text, tag=None):
        self.p(text)
        self.n += 1
        if tag is not None:
            self.pos[tag] = self.n

    def need(self, tags):
        k = max([self.pos[t] for t in tags] + [0])
        if k <= self.done:
            return None
        out = min(self.n - k, 15)
        self.done = self.n - out
        return "s_waitcnt lgkmcnt(%d)" % out

    def wait(self, tags):
        w = self.need(tags)
        if w:
            self.p(w)
            return 1
        return 0


def schedule(p, dq, main, side, maxv=1):
    side = list(side)
    for i, (text, needs) in enumerate(main):
        for t in needs:
            while t not in dq.pos:
                cand = [s for s in side if s.get("ready", 0) <= i]
                assert cand, ("unschedulable", t, i)
                s = cand[0]
                side.remove(s)
                _emit_side(p, dq, s)
        used = dq.wait(needs)
        p(text)
        slots, nv, lds = 2, 0, 0
        progress = True
        while slots > 0 and progress:
            progress = False
            for want_valu in (False, True):
                seen_chain = set()
                for s in side:
                    ch = s.get("chain")
                    if ch in seen_chain:
                        continue
                    ok = s.get("ready", 0) <= i
                    kind = "bar" if s.get("barrier") else Ins(s["text"]).kind
                    if (kind == "valu") != want_valu:
                        ok = False
                    if ok and kind == "valu" and nv >= maxv:
                        ok = False
                    if ok and kind in ("ds", "vmem") and (nv or lds + s.get("w", 1.0) > 1.0):
                        ok = False
                    if ok and kind == "bar" and slots < 2:
                        ok = False
                    if ok:
                        side.remove(s)
                        _emit_side(p, dq, s)
                        slots -= 2 if kind == "bar" else 1
                        if kind == "valu":
                            nv += 1
                        if kind == "ds":
                            lds += s.get("w", 1.0)
                        progress = True
                        break
                    if ch is not None:
                        seen_chain.add(ch)
                if progress:
                    break
    for s in side:
        _emit_side(p, dq, s)


def _emit_side(p, dq, s):
    if s.get("barrier"):
        dq.wait(s.get("needs", []))
        p("s_barrier")
        if s.get("tag"):
            dq.pos[s["tag"]] = 0
        return
    if s.get("needs"):
        dq.wait(s["needs"])
    if Ins(s["text"]).kind == "ds":
        dq.issue(s["text"], s.get("tag"))
    else:
        p(s["text"])
```

```python
from asmlib import *
import spec as sp

def kbegin(p, name):
    p.raw(".p2align 8")
    p.raw(".globl %s" % name)
    p.raw(".type %s,@function" % name)
    p.raw("%s:" % name)
    p.hist = []

def kdesc(name, nvgpr, nagpr=0, nsgpr=102):
    acc = max(4, (nvgpr + 3) // 4 * 4)
    tot = acc + nagpr if nagpr else nvgpr
    return """.p2align 6
.amdhsa_kernel %s
  .amdhsa_next_free_vgpr %d
  .amdhsa_next_free_sgpr %d
  .amdhsa_accum_offset %d
  .amdhsa_group_segment_fixed_size 0
  .amdhsa_kernarg_size 120
  .amdhsa_user_sgpr_count 2
  .amdhsa_user_sgpr_kernarg_segment_ptr 1
  .amdhsa_system_sgpr_workgroup_id_x 1
  .amdhsa_float_denorm_mode_32 3
.end_amdhsa_kernel
""" % (name, tot, nsgpr, acc)

def load_srds(p, items):
    for name, b in items:
        p("s_load_dwordx2 s[%d:%d], s[0:1], %d" % (b, b + 1, sp.KA[name]))
    p("s_waitcnt lgkmcnt(0)")
    for name, b in items:
        p("s_and_b32 s%d, s%d, 0xffff" % (b + 1, b + 1))
        p("s_mov_b32 s%d, 0x%x" % (b + 2, sp.NBYTES[name]))
        p("s_mov_b32 s%d, 0x00020000" % (b + 3))

def fhex(x):
    import struct
    return "0x%08x" % struct.unpack("<I", struct.pack("<f", x))[0]

def wait_flags(p, vaddr, vtmp, ws, sspin, fail, sleep=4, soff="0"):
    lab, done = p.newlabel("wf"), p.newlabel("wfd")
    p("s_mov_b32 s%d, 0" % sspin)
    p.label(lab)
    p("buffer_load_dword v%d, v%d, s[%d:%d], %s offen sc1" % (vtmp, vaddr, ws, ws + 3, soff))
    p("s_add_u32 s%d, s%d, 1" % (sspin, sspin))
    p("s_cmp_gt_u32 s%d, %d" % (sspin, 1 << 18))
    p.branch("s_cbranch_scc1 %s" % fail, flush=False)
    p("s_waitcnt vmcnt(0)")
    p("v_cmp_eq_u32 vcc, 0, v%d" % vtmp)
    p.branch("s_cbranch_vccz %s" % done, flush=False)
    p("s_sleep %d" % sleep)
    p.branch("s_branch %s" % lab, flush=False)
    p.label(done)

def set_flag(p, ws, soff_sgpr, v0="v0", vt=1):
    p("s_waitcnt vmcnt(0) lgkmcnt(0)")
    p("s_barrier")
    p("v_mov_b32 v%d, 0x7f000000" % vt)
    p("v_cmp_eq_u32 vcc, 0, %s" % v0)
    p("v_cndmask_b32 v%d, v%d, 0, vcc" % (vt, vt) if False else "v_cndmask_b32 v%d, v%d, %s, vcc" % (vt, vt, v0))
    p("v_mov_b32 v%d, 1" % (vt + 1))
    p("buffer_store_dword v%d, v%d, s[%d:%d], s%d offen sc1" % (vt + 1, vt, ws, ws + 3, soff_sgpr))
```

```python
from gen_common import *

NLN = 128
NPOIS = 130
NCAL = 9
def gen_prep(p):
    name = "prep_kernel"
    kbegin(p, name)
    p("s_cmp_ge_u32 s2, %d" % (NLN + NPOIS + NCAL))
    p.branch("s_cbranch_scc1 prep_done")
    X, M0, WS = 12, 16, 20
    load_srds(p, [("x", X), ("mem0", M0), ("ws", WS)])
    p("s_cmp_ge_u32 s2, %d" % (NLN + NPOIS))
    p.branch("s_cbranch_scc1 prep_calib")
    p("s_cmp_ge_u32 s2, %d" % NLN)
    p.branch("s_cbranch_scc1 prep_poison")
    p("v_and_b32 v1, 63, v0")
    p("v_lshrrev_b32 v2, 6, v0")
    p("v_and_b32 v3, 15, v1")
    p("v_lshrrev_b32 v4, 4, v1")
    p("s_lshl_b32 s3, s2, 4")
    p("v_add_u32 v5, s3, v3")
    p("v_mul_u32_u24 v5, 1280, v5")
    p("v_mul_u32_u24 v6, 320, v2")
    p("v_add_u32 v5, v5, v6")
    p("v_lshl_add_u32 v5, v4, 3, v5")
    RAW, FL = 8, 32
    for k in range(5):
        p("buffer_load_dwordx2 v[%d:%d], v5, s[%d:%d], 0 offen offset:%d" % (RAW + 4 * k, RAW + 4 * k + 1, X, X + 3, k * 64))
        p("buffer_load_dwordx2 v[%d:%d], v5, s[%d:%d], 0 offen offset:%d" % (RAW + 4 * k + 2, RAW + 4 * k + 3, X, X + 3, k * 64 + 32))
    p("v_lshlrev_b32 v7, 6, v3")
    p("v_lshl_add_u32 v6, v2, 2, v4")
    p("v_lshl_add_u32 v6, v6, 2, v7")
    p("s_mul_i32 s3, s2, %d" % (20 * 1024))
    p("v_mul_u32_u24 v28, %d, v2" % (5 * 1024))
    p("v_lshl_add_u32 v28, v1, 4, v28")
    p("v_add_u32 v28, s3, v28")
    p("s_waitcnt vmcnt(0)")
    def unpack():
        for i in range(20):
            p("v_lshlrev_b32 v%d, 16, v%d" % (FL + 2 * i, RAW + i))
            p("v_and_b32 v%d, 0xffff0000, v%d" % (FL + 2 * i + 1, RAW + i))
    T = 72
    def reduce(src, region):
        p("ds_write_b32 v6, v%d offset:%d" % (src, region * 1024))
        p("s_waitcnt lgkmcnt(0)")
        p("s_barrier")
        for q in range(4):
            p("ds_read_b128 v[%d:%d], v7 offset:%d" % (T + 4 + 4 * q, T + 7 + 4 * q, region * 1024 + q * 16))
        p("s_waitcnt lgkmcnt(0)")
        b = T + 4
        for st in (8, 4, 2, 1):
            for i in range(st):
                p("v_add_f32 v%d, v%d, v%d" % (b + i, b + i, b + i + st))
        p("v_mul_f32 v%d, %s, v%d" % (src, fhex(1.0 / 640), b))
    def layernorm(region):
        for a in range(4):
            p("v_add_f32 v%d, v%d, v%d" % (T + a, FL + a, FL + 4 + a))
        for i in range(8, 40):
            p("v_add_f32 v%d, v%d, v%d" % (T + i % 4, T + i % 4, FL + i))
        p("v_add_f32 v%d, v%d, v%d" % (T, T, T + 1))
        p("v_add_f32 v%d, v%d, v%d" % (T + 2, T + 2, T + 3))
        p("v_add_f32 v%d, v%d, v%d" % (T, T, T + 2))
        reduce(T, region)
        p("v_mov_b32 v29, v%d" % T)
        for a in range(4):
            p("v_mov_b32 v%d, 0" % (T + a))
        for i in range(40):
            p("v_sub_f32 v30, v%d, v29" % (FL + i))
            p("v_fmac_f32 v%d, v30, v30" % (T + i % 4))
        p("v_add_f32 v%d, v%d, v%d" % (T, T, T + 1))
        p("v_add_f32 v%d, v%d, v%d" % (T + 2, T + 2, T + 3))
        p("v_add_f32 v%d, v%d, v%d" % (T, T, T + 2))
        reduce(T, region + 1)
        p("v_cvt_pk_bf16_f32 v30, v29, v%d" % T)
        p("v_lshlrev_b32 v29, 16, v30")
        p("v_and_b32 v30, 0xffff0000, v30")
        p("v_add_f32 v30, %s, v30" % fhex(1e-5))
        p("v_cvt_pk_bf16_f32 v30, v30, v30")
        p("v_and_b32 v30, 0xffff0000, v30")
        p("v_sqrt_f32 v30, v30")
        p("v_cvt_pk_bf16_f32 v30, v30, v30")
        p("v_and_b32 v30, 0xffff0000, v30")
        p("v_rcp_f32 v31, v30")
        p("v_fma_f32 v30, -v30, v31, 2.0")
        p("v_mul_f32 v31, v31, v30")
        for i in range(20):
            a, b = FL + 2 * i, FL + 2 * i + 1
            p("v_sub_f32 v%d, v%d, v29" % (a, a))
            p("v_sub_f32 v%d, v%d, v29" % (b, b))
            p("v_cvt_pk_bf16_f32 v30, v%d, v%d" % (a, b))
            p("v_lshlrev_b32 v%d, 16, v30" % a)
            p("v_and_b32 v%d, 0xffff0000, v30" % b)
            p("v_mul_f32 v%d, v%d, v31" % (a, a))
            p("v_mul_f32 v%d, v%d, v31" % (b, b))
            p("v_cvt_pk_bf16_f32 v%d, v%d, v%d" % (RAW + i, a, b))
    unpack()
    layernorm(0)
    p("s_mov_b32 s3, 0x%x" % sp.XNF)
    for k in range(5):
        p("buffer_store_dwordx4 v[%d:%d], v28, s[%d:%d], s3 offen offset:%d" % (RAW + 4 * k, RAW + 4 * k + 3, WS, WS + 3, k * 1024) if k < 4 else
          "buffer_store_dwordx4 v[%d:%d], v28, s[%d:%d], s4 offen" % (RAW + 4 * k, RAW + 4 * k + 3, WS, WS + 3)) if k < 4 else None
    p("s_mov_b32 s4, 0x%x" % (sp.XNF + 4096))
    p("buffer_store_dwordx4 v[%d:%d], v28, s[%d:%d], s4 offen" % (RAW + 16, RAW + 19, WS, WS + 3))
    unpack()
    p("s_nop 1")
    layernorm(2)
    p("s_mov_b32 s3, 0x%x" % sp.YNF)
    p("s_mov_b32 s4, 0x%x" % (sp.YNF + 4096))
    for k in range(4):
        p("buffer_store_dwordx4 v[%d:%d], v28, s[%d:%d], s3 offen offset:%d" % (RAW + 4 * k, RAW + 4 * k + 3, WS, WS + 3, k * 1024))
    p("buffer_store_dwordx4 v[%d:%d], v28, s[%d:%d], s4 offen" % (RAW + 16, RAW + 19, WS, WS + 3))
    p("s_endpgm")
    p.label("prep_poison")
    p("s_sub_u32 s3, s2, %d" % NLN)
    p("s_lshl_b32 s4, s3, 17")
    p("s_add_u32 s4, s4, 0x%x" % sp.HAND)
    p("v_lshlrev_b32 v1, 4, v0")
    for i in range(4):
        p("v_mov_b32 v%d, -1" % (4 + i))
    p("v_mov_b32 v3, 0x7f000000")
    p("v_cmp_gt_u32 vcc, 128, v0")
    p("v_cndmask_b32 v2, v3, v1, vcc")
    for blk in range(32):
        hole = (blk % 16) in (5, 7)
        p("buffer_store_dwordx4 v[4:7], v%d, s[%d:%d], s4 offen" % (2 if hole else 1, WS, WS + 3))
        p("s_add_u32 s4, s4, 4096")
    p("s_sub_u32 s5, s3, 2")
    p("s_cmp_lt_u32 s5, 16")
    lz = ["s_lshl_b32 s5, s5, 12", "s_add_u32 s5, s5, 0x%x" % sp.FLG] + ["v_mov_b32 v%d, 0" % (8 + i) for i in range(4)] + \
         ["buffer_store_dwordx4 v[8:11], v1, s[%d:%d], s5 offen" % (WS, WS + 3)]
    skipblock(p, "s_cbranch_scc0", lz)
    p("s_cmp_ge_u32 s3, 2")
    p.branch("s_cbranch_scc1 prep_done")
    p("s_waitcnt vmcnt(0)")
    p("s_barrier")
    p("s_lshl_b32 s4, s3, 17")
    p("s_add_u32 s4, s4, 0x%x" % sp.HAND)
    for part in range(3):
        p("v_add_u32 v2, %d, v0" % (part * 256))
        p("v_and_b32 v3, 7, v2")
        p("v_lshrrev_b32 v8, 3, v2")
        p("v_mul_u32_u24 v3, 1280, v3")
        p("v_lshl_add_u32 v3, v8, 4, v3")
        if part == 2:
            p("v_cmp_gt_u32 vcc, 128, v0")
            p("v_mov_b32 v9, 0x7fffffff")
            p("v_cndmask_b32 v3, v9, v3, vcc")
            p("v_add_u32 v10, 0x%x, v1" % sp.BLK)
            p("v_mov_b32 v9, 0x7ff00000")
            p("v_cndmask_b32 v10, v9, v10, vcc")
        else:
            p("v_add_u32 v10, %d, v1" % (part * 4096))
        p("buffer_load_dwordx4 v[12:15], v3, s[%d:%d], 0 offen" % (M0, M0 + 3))
        p("s_waitcnt vmcnt(0)")
        for i in range(4):
            p("v_min_u32 v%d, 0xfffffffe, v%d" % (12 + i, 12 + i))
        for sl in range(2):
            for par in range(2):
                p("s_add_u32 s5, s4, 0x%x" % (sl * sp.SLOT + par * 8192))
                p("buffer_store_dwordx4 v[12:15], v10, s[%d:%d], s5 offen" % (WS, WS + 3))
        p("s_nop 1")
    p("s_endpgm")
    p.label("prep_calib")
    p("v_readfirstlane_b32 s3, v0")
    p("s_cmp_ge_u32 s3, 64")
    p.branch("s_cbranch_scc1 prep_done")
    p("s_sub_u32 s3, s2, %d" % (NLN + NPOIS))
    p("s_lshl_b32 s4, s3, 21")
    p("s_add_u32 s4, s4, 0x%x" % (sp.HAND + sp.BLK + 6144))
    p("v_mov_b32 v1, 0")
    p("s_mov_b32 s30, -1")
    p("s_mov_b32 s31, -1")
    for smp in range(6):
        for par in range(2):
            p("s_add_u32 s5, s4, %d" % (par * 8192 + smp * 256))
            p("s_memtime s[24:25]")
            p("s_waitcnt lgkmcnt(0)")
            p("buffer_load_dword v2, v1, s[%d:%d], s5 offen sc1" % (WS, WS + 3))
            p("s_waitcnt vmcnt(0)")
            p("s_memtime s[26:27]")
            p("s_waitcnt lgkmcnt(0)")
            p("s_sub_u32 s28, s26, s24")
            p("s_min_u32 s%d, s%d, s28" % (30 + par, 30 + par))
    p("s_cmp_lt_u32 s31, s30")
    p("s_cselect_b32 s6, 1, 0")
    p("s_getreg_b32 s7, hwreg(HW_REG_XCC_ID)")
    p("s_bfe_u32 s7, s7, 0x10002")
    p("s_xor_b32 s6, s6, s7")
    p("s_lshl_b32 s5, s3, 2")
    p("s_add_u32 s5, s5, 0x%x" % sp.CALIB)
    p("v_mov_b32 v2, s6")
    p("buffer_store_dword v2, v1, s[%d:%d], s5 offen" % (WS, WS + 3))
    p("v_mov_b32 v2, s30")
    p("v_mov_b32 v3, s31")
    p("s_lshl_b32 s5, s3, 3")
    p("s_add_u32 s5, s5, 0x%x" % (sp.CALIB + 64))
    p("buffer_store_dwordx2 v[2:3], v1, s[%d:%d], s5 offen" % (WS, WS + 3))
    p.label("prep_done")
    p("s_endpgm")
    return name, (NLN + NPOIS + NCAL, 256, 4096), kdesc(name, 96)
```

```python
S, D, H, E, F, M, SEG, NSEG = 2048, 640, 32, 192, 1536, 8, 32, 64
XNF = 0x0000000
YNF = 0x0280000
GF  = 0x0500000
HF  = 0x0800000
QF  = 0x1000000
KF  = 0x2800000
VOXF = 0x4000000
VOMF = 0x9000000
KMF = 0xAA00000
UMF = 0xB600000
PXF = 0xCA00000
HAND = 0xD000000
CTRL = 0xE200000
CALIB = 0xE300000
WS_BYTES = 0x10000000
NREP = 4
SLOT = 0x10000
BLK = 0x4000
PM_OFF = BLK + 2048
PX_OFF = 2 * BLK
KA = dict(x=0, mem0=8, Wq=16, Wk=24, Wv=32, Wo=40, seglen=48, Bx=56, w1=64, b1=72, w2=80, b2=88, out=96, dbg=104, ws=112)
NBYTES = dict(x=S*D*2, mem0=M*D*2, Wq=D*H*E*2, Wk=D*H*E*2, Wv=D*H*E*2, Wo=H*E*D*2, w1=D*F*2, b1=F*2, w2=F*D*2, b2=D*2, out=S*D*2, dbg=256, ws=WS_BYTES)
FLG = 0xE280000
F_VO, F_K, F_Q, F_H, F_VM, F_G = 0x0, 0x800, 0x1000, 0x1800, 0x2000, 0x2800
F_KM, F_UM, F_PX = 0x3000, 0x5000, 0xD000
FLG_BYTES = 0x10000
F_VO2 = 0x2000
F_LN, F_YN, F_POI = 0xF000, 0xF400, 0xF800
```

```python
from asmlib import *
import spec as sp

def kbegin(p, name):
    p.raw(".p2align 8")
    p.raw(".globl %s" % name)
    p.raw(".type %s,@function" % name)
    p.raw("%s:" % name)
    p.hist = []

def kdesc(name, nvgpr, nagpr=0, nsgpr=102):
    acc = max(4, (nvgpr + 3) // 4 * 4)
    tot = acc + nagpr if nagpr else nvgpr
    return """.p2align 6
.amdhsa_kernel %s
  .amdhsa_next_free_vgpr %d
  .amdhsa_next_free_sgpr %d
  .amdhsa_accum_offset %d
  .amdhsa_group_segment_fixed_size 0
  .amdhsa_kernarg_size 120
  .amdhsa_user_sgpr_count 2
  .amdhsa_user_sgpr_kernarg_segment_ptr 1
  .amdhsa_system_sgpr_workgroup_id_x 1
  .amdhsa_float_denorm_mode_32 3
.end_amdhsa_kernel
""" % (name, tot, nsgpr, acc)

def load_srds(p, items):
    for name, b in items:
        p("s_load_dwordx2 s[%d:%d], s[0:1], %d" % (b, b + 1, sp.KA[name]))
    p("s_waitcnt lgkmcnt(0)")
    for name, b in items:
        p("s_and_b32 s%d, s%d, 0xffff" % (b + 1, b + 1))
        p("s_mov_b32 s%d, 0x%x" % (b + 2, sp.NBYTES[name]))
        p("s_mov_b32 s%d, 0x00020000" % (b + 3))

def fhex(x):
    import struct
    return "0x%08x" % struct.unpack("<I", struct.pack("<f", x))[0]

def wait_flags(p, vaddr, vtmp, ws, sspin, fail, sleep=4, soff="0"):
    lab, done = p.newlabel("wf"), p.newlabel("wfd")
    p("s_mov_b32 s%d, 0" % sspin)
    p.label(lab)
    p("buffer_load_dword v%d, v%d, s[%d:%d], %s offen sc1" % (vtmp, vaddr, ws, ws + 3, soff))
    p("s_add_u32 s%d, s%d, 1" % (sspin, sspin))
    p("s_cmp_gt_u32 s%d, %d" % (sspin, 1 << 18))
    p.branch("s_cbranch_scc1 %s" % fail, flush=False)
    p("s_waitcnt vmcnt(0)")
    p("v_cmp_eq_u32 vcc, 0, v%d" % vtmp)
    p.branch("s_cbranch_vccz %s" % done, flush=False)
    p("s_sleep %d" % sleep)
    p.branch("s_branch %s" % lab, flush=False)
    p.label(done)

def set_flag(p, ws, soff_sgpr, v0="v0", vt=1):
    p("s_waitcnt vmcnt(0) lgkmcnt(0)")
    p("s_barrier")
    p("v_mov_b32 v%d, 0x7f000000" % vt)
    p("v_cmp_eq_u32 vcc, 0, %s" % v0)
    p("v_cndmask_b32 v%d, v%d, 0, vcc" % (vt, vt) if False else "v_cndmask_b32 v%d, v%d, %s, vcc" % (vt, vt, v0))
    p("v_mov_b32 v%d, 1" % (vt + 1))
    p("buffer_store_dword v%d, v%d, s[%d:%d], s%d offen sc1" % (vt + 1, vt, ws, ws + 3, soff_sgpr))

D_ERR, D_ZERO, D_CAL, D_POI, D_VM, D_LN = 0, 1, 2, 3, 4, 8
def wait_counter(p, dbg, off, target, va, vt, sspin, fail="rec_fail", sleep=4):
    lab, done = p.newlabel("wc"), p.newlabel("wcd")
    p("v_mov_b32 v%d, 0" % va)
    p("s_mov_b32 s%d, 0" % sspin)
    p.label(lab)
    if isinstance(off, int):
        p("buffer_load_dword v%d, v%d, s[%d:%d], 0 offen offset:%d sc1" % (vt, va, dbg, dbg + 3, off))
    else:
        p("buffer_load_dword v%d, v%d, s[%d:%d], %s offen sc1" % (vt, va, dbg, dbg + 3, off))
    p("s_add_u32 s%d, s%d, 1" % (sspin, sspin))
    p("s_cmp_gt_u32 s%d, %d" % (sspin, 1 << 18))
    p.branch("s_cbranch_scc1 %s" % fail, flush=False)
    p("s_waitcnt vmcnt(0)")
    p("v_cmp_gt_u32 vcc, %d, v%d" % (target, vt))
    p.branch("s_cbranch_vccz %s" % done, flush=False)
    p("s_sleep %d" % sleep)
    p.branch("s_branch %s" % lab, flush=False)
    p.label(done)

def add_counter(p, dbg, off, va, vt, val=1, sync=True):
    if sync:
        p("s_waitcnt vmcnt(0) lgkmcnt(0)")
        p("s_barrier")
    p("v_mov_b32 v%d, 0x7f000000" % va)
    p("v_cmp_eq_u32 vcc, 0, v0")
    p("v_cndmask_b32 v%d, v%d, v0, vcc" % (va, va))
    p("v_mov_b32 v%d, %s" % (vt, val))
    if isinstance(off, int):
        p("buffer_atomic_add v%d, v%d, s[%d:%d], 0 offen offset:%d" % (vt, va, dbg, dbg + 3, off))
    else:
        p("buffer_atomic_add v%d, v%d, s[%d:%d], %s offen" % (vt, va, dbg, dbg + 3, off))
```

```python
from gen_common import *

NLN = 128
NPOIS = 130
NCAL = 9
def ln_body(p):
    p.label("ln_entry")
    X, DBG, WS = 12, 16, 20
    load_srds(p, [("x", X), ("dbg", DBG), ("ws", WS)])
    p("s_cmp_lt_u32 s2, 16")
    p.branch("s_cbranch_scc0 ln_go")
    p("v_lshlrev_b32 v1, 4, v0")
    p("s_lshl_b32 s5, s2, 12")
    p("s_add_u32 s5, s5, 0x%x" % sp.FLG)
    for i in range(4): p("v_mov_b32 v%d, 0" % (8 + i))
    p("buffer_store_dwordx4 v[8:11], v1, s[%d:%d], s5 offen sc1" % (WS, WS + 3))
    p.label("ln_go")
    p("v_and_b32 v1, 63, v0")
    p("v_lshrrev_b32 v2, 6, v0")
    p("v_and_b32 v3, 15, v1")
    p("v_lshrrev_b32 v4, 4, v1")
    p("s_lshl_b32 s3, s2, 4")
    p("v_add_u32 v5, s3, v3")
    p("v_mul_u32_u24 v5, 1280, v5")
    p("v_mul_u32_u24 v6, 320, v2")
    p("v_add_u32 v5, v5, v6")
    p("v_lshl_add_u32 v5, v4, 3, v5")
    RAW, FL = 8, 32
    for k in range(5):
        p("buffer_load_dwordx2 v[%d:%d], v5, s[%d:%d], 0 offen offset:%d" % (RAW + 4 * k, RAW + 4 * k + 1, X, X + 3, k * 64))
        p("buffer_load_dwordx2 v[%d:%d], v5, s[%d:%d], 0 offen offset:%d" % (RAW + 4 * k + 2, RAW + 4 * k + 3, X, X + 3, k * 64 + 32))
    p("v_lshlrev_b32 v7, 6, v3")
    p("v_lshl_add_u32 v6, v2, 2, v4")
    p("v_lshl_add_u32 v6, v6, 2, v7")
    p("s_mul_i32 s3, s2, %d" % (20 * 1024))
    p("v_mul_u32_u24 v28, %d, v2" % (5 * 1024))
    p("v_lshl_add_u32 v28, v1, 4, v28")
    p("v_add_u32 v28, s3, v28")
    p("s_waitcnt vmcnt(0)")
    def unpack():
        for i in range(20):
            p("v_lshlrev_b32 v%d, 16, v%d" % (FL + 2 * i, RAW + i))
            p("v_and_b32 v%d, 0xffff0000, v%d" % (FL + 2 * i + 1, RAW + i))
    T = 72
    def reduce(src, region):
        p("ds_write_b32 v6, v%d offset:%d" % (src, region * 1024))
        p("s_waitcnt lgkmcnt(0)")
        p("s_barrier")
        for q in range(4):
            p("ds_read_b128 v[%d:%d], v7 offset:%d" % (T + 4 + 4 * q, T + 7 + 4 * q, region * 1024 + q * 16))
        p("s_waitcnt lgkmcnt(0)")
        b = T + 4
        for st in (8, 4, 2, 1):
            for i in range(st):
                p("v_add_f32 v%d, v%d, v%d" % (b + i, b + i, b + i + st))
        p("v_mul_f32 v%d, %s, v%d" % (src, fhex(1.0 / 640), b))
    def layernorm(region):
        for a in range(4):
            p("v_add_f32 v%d, v%d, v%d" % (T + a, FL + a, FL + 4 + a))
        for i in range(8, 40):
            p("v_add_f32 v%d, v%d, v%d" % (T + i % 4, T + i % 4, FL + i))
        p("v_add_f32 v%d, v%d, v%d" % (T, T, T + 1))
        p("v_add_f32 v%d, v%d, v%d" % (T + 2, T + 2, T + 3))
        p("v_add_f32 v%d, v%d, v%d" % (T, T, T + 2))
        reduce(T, region)
        p("v_mov_b32 v29, v%d" % T)
        for a in range(4):
            p("v_mov_b32 v%d, 0" % (T + a))
        for i in range(40):
            p("v_sub_f32 v30, v%d, v29" % (FL + i))
            p("v_fmac_f32 v%d, v30, v30" % (T + i % 4))
        p("v_add_f32 v%d, v%d, v%d" % (T, T, T + 1))
        p("v_add_f32 v%d, v%d, v%d" % (T + 2, T + 2, T + 3))
        p("v_add_f32 v%d, v%d, v%d" % (T, T, T + 2))
        reduce(T, region + 1)
        p("v_cvt_pk_bf16_f32 v30, v29, v%d" % T)
        p("v_lshlrev_b32 v29, 16, v30")
        p("v_and_b32 v30, 0xffff0000, v30")
        p("v_add_f32 v30, %s, v30" % fhex(1e-5))
        p("v_cvt_pk_bf16_f32 v30, v30, v30")
        p("v_and_b32 v30, 0xffff0000, v30")
        p("v_sqrt_f32 v30, v30")
        p("v_cvt_pk_bf16_f32 v30, v30, v30")
        p("v_and_b32 v30, 0xffff0000, v30")
        p("v_rcp_f32 v31, v30")
        p("v_fma_f32 v30, -v30, v31, 2.0")
        p("v_mul_f32 v31, v31, v30")
        for i in range(20):
            a, b = FL + 2 * i, FL + 2 * i + 1
            p("v_sub_f32 v%d, v%d, v29" % (a, a))
            p("v_sub_f32 v%d, v%d, v29" % (b, b))
            p("v_cvt_pk_bf16_f32 v30, v%d, v%d" % (a, b))
            p("v_lshlrev_b32 v%d, 16, v30" % a)
            p("v_and_b32 v%d, 0xffff0000, v30" % b)
            p("v_mul_f32 v%d, v%d, v31" % (a, a))
            p("v_mul_f32 v%d, v%d, v31" % (b, b))
            p("v_cvt_pk_bf16_f32 v%d, v%d, v%d" % (RAW + i, a, b))
    unpack()
    layernorm(0)
    p("s_mov_b32 s3, 0x%x" % sp.XNF)
    for k in range(5):
        p("buffer_store_dwordx4 v[%d:%d], v28, s[%d:%d], s3 offen offset:%d sc1" % (RAW + 4 * k, RAW + 4 * k + 3, WS, WS + 3, k * 1024) if k < 4 else
          "buffer_store_dwordx4 v[%d:%d], v28, s[%d:%d], s4 offen" % (RAW + 4 * k, RAW + 4 * k + 3, WS, WS + 3)) if k < 4 else None
    p("s_mov_b32 s4, 0x%x" % (sp.XNF + 4096))
    p("buffer_store_dwordx4 v[%d:%d], v28, s[%d:%d], s4 offen sc1" % (RAW + 16, RAW + 19, WS, WS + 3))
    unpack()
    p("s_nop 1")
    layernorm(2)
    p("s_mov_b32 s3, 0x%x" % sp.YNF)
    p("s_mov_b32 s4, 0x%x" % (sp.YNF + 4096))
    for k in range(4):
        p("buffer_store_dwordx4 v[%d:%d], v28, s[%d:%d], s3 offen offset:%d sc1" % (RAW + 4 * k, RAW + 4 * k + 3, WS, WS + 3, k * 1024))
    p("buffer_store_dwordx4 v[%d:%d], v28, s[%d:%d], s4 offen sc1" % (RAW + 16, RAW + 19, WS, WS + 3))
    p("s_lshr_b32 s5, s2, 4")
    p("s_lshl_b32 s5, s5, 2")
    p("s_add_u32 s5, s5, %d" % (4 * D_LN))
    add_counter(p, DBG, "s5", 1, 2)
    p("s_cmp_lt_u32 s2, 16")
    p.branch("s_cbranch_scc0 w_next")
    add_counter(p, DBG, 4 * D_ZERO, 1, 2, sync=False)
    p.branch("s_branch w_next")
```

```python
from gen_common import *

NLN = 128
NPOIS = 130
NCAL = 9
def ln_body(p, trace=lambda p: None):
    p.label("ln_entry")
    p("s_mov_b32 s80, 0")
    X, DBG, WS = 12, 16, 20
    load_srds(p, [("x", X), ("dbg", DBG), ("ws", WS), ("Wv", 24), ("Wk", 28), ("Wo", 32)])
    p("s_cmp_lt_u32 s2, 16")
    p.branch("s_cbranch_scc0 ln_go")
    p("v_lshlrev_b32 v1, 4, v0")
    p("s_lshl_b32 s5, s2, 12")
    p("s_add_u32 s5, s5, 0x%x" % sp.FLG)
    for i in range(4): p("v_mov_b32 v%d, 0" % (8 + i))
    p("buffer_store_dwordx4 v[8:11], v1, s[%d:%d], s5 offen sc1" % (WS, WS + 3))
    add_counter(p, DBG, 4 * D_ZERO, 1, 2)
    p.label("ln_go")
    p("v_and_b32 v1, 63, v0")
    p("v_lshrrev_b32 v2, 6, v0")
    p("v_and_b32 v3, 15, v1")
    p("v_lshrrev_b32 v4, 4, v1")
    p("s_lshl_b32 s3, s2, 4")
    p("v_add_u32 v5, s3, v3")
    p("v_mul_u32_u24 v5, 1280, v5")
    p("v_mul_u32_u24 v6, 320, v2")
    p("v_add_u32 v5, v5, v6")
    p("v_lshl_add_u32 v5, v4, 3, v5")
    RAW, FL = 8, 32
    for k in range(5):
        p("buffer_load_dwordx2 v[%d:%d], v5, s[%d:%d], 0 offen offset:%d" % (RAW + 4 * k, RAW + 4 * k + 1, X, X + 3, k * 64))
        p("buffer_load_dwordx2 v[%d:%d], v5, s[%d:%d], 0 offen offset:%d" % (RAW + 4 * k + 2, RAW + 4 * k + 3, X, X + 3, k * 64 + 32))
    p("v_lshlrev_b32 v7, 6, v3")
    p("v_lshl_add_u32 v6, v2, 2, v4")
    p("v_lshl_add_u32 v6, v6, 2, v7")
    p("s_mul_i32 s3, s2, %d" % (20 * 1024))
    p("v_mul_u32_u24 v28, %d, v2" % (5 * 1024))
    p("v_lshl_add_u32 v28, v1, 4, v28")
    p("v_add_u32 v28, s3, v28")
    import os
    NPF = 0 if int(os.environ.get("NOPF", "1")) else 15
    p("v_lshlrev_b32 v29, 4, v0")
    p("s_mul_i32 s6, s2, 61440")
    for i in range(NPF):
        for srd in (24, 32, 28):
            p("buffer_load_dwordx4 v[100:103], v29, s[%d:%d], s6 offen" % (srd, srd + 3))
        p("s_add_u32 s6, s6, 4096")
    p("s_waitcnt vmcnt(%d)" % (3 * NPF))
    def unpack():
        for i in range(20):
            p("v_lshlrev_b32 v%d, 16, v%d" % (FL + 2 * i, RAW + i))
            p("v_and_b32 v%d, 0xffff0000, v%d" % (FL + 2 * i + 1, RAW + i))
    T = 72
    def reduce(src, region):
        p("ds_write_b32 v6, v%d offset:%d" % (src, region * 1024))
        p("s_waitcnt lgkmcnt(0)")
        p("s_barrier")
        for q in range(4):
            p("ds_read_b128 v[%d:%d], v7 offset:%d" % (T + 4 + 4 * q, T + 7 + 4 * q, region * 1024 + q * 16))
        p("s_waitcnt lgkmcnt(0)")
        b = T + 4
        for st in (8, 4, 2, 1):
            for i in range(st):
                p("v_add_f32 v%d, v%d, v%d" % (b + i, b + i, b + i + st))
        p("v_mul_f32 v%d, %s, v%d" % (src, fhex(1.0 / 640), b))
    def layernorm(region):
        for a in range(4):
            p("v_add_f32 v%d, v%d, v%d" % (T + a, FL + a, FL + 4 + a))
        for i in range(8, 40):
            p("v_add_f32 v%d, v%d, v%d" % (T + i % 4, T + i % 4, FL + i))
        p("v_add_f32 v%d, v%d, v%d" % (T, T, T + 1))
        p("v_add_f32 v%d, v%d, v%d" % (T + 2, T + 2, T + 3))
        p("v_add_f32 v%d, v%d, v%d" % (T, T, T + 2))
        reduce(T, region)
        p("v_mov_b32 v29, v%d" % T)
        for a in range(4):
            p("v_mov_b32 v%d, 0" % (T + a))
        for i in range(40):
            p("v_sub_f32 v30, v%d, v29" % (FL + i))
            p("v_fmac_f32 v%d, v30, v30" % (T + i % 4))
        p("v_add_f32 v%d, v%d, v%d" % (T, T, T + 1))
        p("v_add_f32 v%d, v%d, v%d" % (T + 2, T + 2, T + 3))
        p("v_add_f32 v%d, v%d, v%d" % (T, T, T + 2))
        reduce(T, region + 1)
        p("v_cvt_pk_bf16_f32 v30, v29, v%d" % T)
        p("v_lshlrev_b32 v29, 16, v30")
        p("v_and_b32 v30, 0xffff0000, v30")
        p("v_add_f32 v30, %s, v30" % fhex(1e-5))
        p("v_cvt_pk_bf16_f32 v30, v30, v30")
        p("v_and_b32 v30, 0xffff0000, v30")
        p("v_sqrt_f32 v30, v30")
        p("v_cvt_pk_bf16_f32 v30, v30, v30")
        p("v_and_b32 v30, 0xffff0000, v30")
        p("v_rcp_f32 v31, v30")
        p("v_fma_f32 v30, -v30, v31, 2.0")
        p("v_mul_f32 v31, v31, v30")
        for i in range(20):
            a, b = FL + 2 * i, FL + 2 * i + 1
            p("v_sub_f32 v%d, v%d, v29" % (a, a))
            p("v_sub_f32 v%d, v%d, v29" % (b, b))
            p("v_cvt_pk_bf16_f32 v30, v%d, v%d" % (a, b))
            p("v_lshlrev_b32 v%d, 16, v30" % a)
            p("v_and_b32 v%d, 0xffff0000, v30" % b)
            p("v_mul_f32 v%d, v%d, v31" % (a, a))
            p("v_mul_f32 v%d, v%d, v31" % (b, b))
            p("v_cvt_pk_bf16_f32 v%d, v%d, v%d" % (RAW + i, a, b))
    trace(p)
    unpack()
    layernorm(0)
    trace(p)
    p("s_mov_b32 s3, 0x%x" % sp.XNF)
    for k in range(5):
        p("buffer_store_dwordx4 v[%d:%d], v28, s[%d:%d], s3 offen offset:%d sc1" % (RAW + 4 * k, RAW + 4 * k + 3, WS, WS + 3, k * 1024) if k < 4 else
          "buffer_store_dwordx4 v[%d:%d], v28, s[%d:%d], s4 offen" % (RAW + 4 * k, RAW + 4 * k + 3, WS, WS + 3)) if k < 4 else None
    p("s_mov_b32 s4, 0x%x" % (sp.XNF + 4096))
    p("buffer_store_dwordx4 v[%d:%d], v28, s[%d:%d], s4 offen sc1" % (RAW + 16, RAW + 19, WS, WS + 3))
    unpack()
    p("s_lshr_b32 s5, s2, 4")
    p("s_lshl_b32 s5, s5, 7")
    p("s_and_b32 s6, s2, 15")
    p("s_lshl_b32 s6, s6, 2")
    p("s_add_u32 s5, s5, s6")
    p("s_add_u32 s5, s5, 0x%x" % (sp.FLG + sp.F_LN))
    wait_counter(p, DBG, 4 * D_ZERO, 16, 96, 97, 6)
    p("s_mov_b32 s86, 1")
    set_flag(p, WS, 5, vt=96)
    layernorm(2)
    trace(p)
    p("s_mov_b32 s3, 0x%x" % sp.YNF)
    p("s_mov_b32 s4, 0x%x" % (sp.YNF + 4096))
    for k in range(4):
        p("buffer_store_dwordx4 v[%d:%d], v28, s[%d:%d], s3 offen offset:%d sc1" % (RAW + 4 * k, RAW + 4 * k + 3, WS, WS + 3, k * 1024))
    p("buffer_store_dwordx4 v[%d:%d], v28, s[%d:%d], s4 offen sc1" % (RAW + 16, RAW + 19, WS, WS + 3))
    p("s_add_u32 s5, s5, 0x%x" % (sp.F_YN - sp.F_LN))
    set_flag(p, WS, 5, vt=96)
    p.branch("s_branch w_next")
```

```python
from asmlib import *
import spec as sp

def kbegin(p, name):
    p.raw(".p2align 8")
    p.raw(".globl %s" % name)
    p.raw(".type %s,@function" % name)
    p.raw("%s:" % name)
    p.hist = []

def kdesc(name, nvgpr, nagpr=0, nsgpr=102):
    acc = max(4, (nvgpr + 3) // 4 * 4)
    tot = acc + nagpr if nagpr else nvgpr
    return """.p2align 6
.amdhsa_kernel %s
  .amdhsa_next_free_vgpr %d
  .amdhsa_next_free_sgpr %d
  .amdhsa_accum_offset %d
  .amdhsa_group_segment_fixed_size 0
  .amdhsa_kernarg_size 120
  .amdhsa_user_sgpr_count 2
  .amdhsa_user_sgpr_kernarg_segment_ptr 1
  .amdhsa_system_sgpr_workgroup_id_x 1
  .amdhsa_float_denorm_mode_32 3
.end_amdhsa_kernel
""" % (name, tot, nsgpr, acc)

def load_srds(p, items):
    for name, b in items:
        p("s_load_dwordx2 s[%d:%d], s[0:1], %d" % (b, b + 1, sp.KA[name]))
    p("s_waitcnt lgkmcnt(0)")
    for name, b in items:
        p("s_and_b32 s%d, s%d, 0xffff" % (b + 1, b + 1))
        p("s_mov_b32 s%d, 0x%x" % (b + 2, sp.NBYTES[name]))
        p("s_mov_b32 s%d, 0x00020000" % (b + 3))

def fhex(x):
    import struct
    return "0x%08x" % struct.unpack("<I", struct.pack("<f", x))[0]

def wait_flags(p, vaddr, vtmp, ws, sspin, fail, sleep=4, soff="0"):
    lab, done = p.newlabel("wf"), p.newlabel("wfd")
    p("s_mov_b32 s%d, 0" % sspin)
    p.label(lab)
    p("buffer_load_dword v%d, v%d, s[%d:%d], %s offen sc1" % (vtmp, vaddr, ws, ws + 3, soff))
    p("s_add_u32 s%d, s%d, 1" % (sspin, sspin))
    p("s_cmp_gt_u32 s%d, %d" % (sspin, 1 << 18))
    p.branch("s_cbranch_scc1 %s" % fail, flush=False)
    p("s_waitcnt vmcnt(0)")
    p("v_cmp_eq_u32 vcc, 0, v%d" % vtmp)
    p.branch("s_cbranch_vccz %s" % done, flush=False)
    p("s_sleep %d" % sleep)
    p.branch("s_branch %s" % lab, flush=False)
    p.label(done)

def set_flag(p, ws, soff_sgpr, v0="v0", vt=1):
    p("s_waitcnt vmcnt(0) lgkmcnt(0)")
    p("s_barrier")
    p("v_mov_b32 v%d, 0x7f000000" % vt)
    p("v_cmp_eq_u32 vcc, 0, %s" % v0)
    p("v_cndmask_b32 v%d, v%d, 0, vcc" % (vt, vt) if False else "v_cndmask_b32 v%d, v%d, %s, vcc" % (vt, vt, v0))
    p("v_mov_b32 v%d, 1" % (vt + 1))
    p("buffer_store_dword v%d, v%d, s[%d:%d], s%d offen sc1" % (vt + 1, vt, ws, ws + 3, soff_sgpr))

D_ERR, D_ZERO, D_CAL, D_POI, D_VM, D_LN = 0, 1, 2, 3, 4, 8
def wait_counter(p, dbg, off, target, va, vt, sspin, fail="rec_fail", sleep=4):
    lab, done = p.newlabel("wc"), p.newlabel("wcd")
    p("v_mov_b32 v%d, 0" % va)
    p("s_mov_b32 s%d, 0" % sspin)
    p.label(lab)
    if isinstance(off, int):
        p("buffer_load_dword v%d, v%d, s[%d:%d], 0 offen offset:%d sc1" % (vt, va, dbg, dbg + 3, off))
    else:
        p("buffer_load_dword v%d, v%d, s[%d:%d], %s offen sc1" % (vt, va, dbg, dbg + 3, off))
    p("s_add_u32 s%d, s%d, 1" % (sspin, sspin))
    p("s_cmp_gt_u32 s%d, %d" % (sspin, 1 << 18))
    p.branch("s_cbranch_scc1 %s" % fail, flush=False)
    p("s_waitcnt vmcnt(0)")
    p("v_cmp_gt_u32 vcc, %d, v%d" % (target, vt))
    p.branch("s_cbranch_vccz %s" % done, flush=False)
    p("s_sleep %d" % sleep)
    p.branch("s_branch %s" % lab, flush=False)
    p.label(done)

def add_counter(p, dbg, off, va, vt, val=1, sync=True):
    if sync:
        p("s_waitcnt vmcnt(0) lgkmcnt(0)")
        p("s_barrier")
    p("v_mov_b32 v%d, 0x7f000000" % va)
    p("v_cmp_eq_u32 vcc, 0, v0")
    p("v_cndmask_b32 v%d, v%d, v0, vcc" % (va, va))
    p("v_mov_b32 v%d, %s" % (vt, val))
    if isinstance(off, int):
        p("buffer_atomic_add v%d, v%d, s[%d:%d], 0 offen offset:%d" % (vt, va, dbg, dbg + 3, off))
    else:
        p("buffer_atomic_add v%d, v%d, s[%d:%d], %s offen" % (vt, va, dbg, dbg + 3, off))

def wait_flags2(p, vA, vB, tA, tB, ws, sspin, sflag, fail, sleep=4, soff="0"):
    lab, done = p.newlabel("wf2"), p.newlabel("wf2d")
    p("s_mov_b32 s%d, 0" % sspin)
    p.label(lab)
    p("buffer_load_dword v%d, v%d, s[%d:%d], %s offen sc1" % (tA, vA, ws, ws + 3, soff))
    p("buffer_load_dword v%d, v%d, s[%d:%d], %s offen sc1" % (tB, vB, ws, ws + 3, soff))
    p("s_add_u32 s%d, s%d, 1" % (sspin, sspin))
    p("s_cmp_gt_u32 s%d, %d" % (sspin, 1 << 18))
    p.branch("s_cbranch_scc1 %s" % fail, flush=False)
    p("s_waitcnt vmcnt(0)")
    p("v_cmp_eq_u32 vcc, 0, v%d" % tA)
    p.branch("s_cbranch_vccz %s" % done, flush=False)
    p("s_sleep %d" % sleep)
    p.branch("s_branch %s" % lab, flush=False)
    p.label(done)
    p("v_cmp_eq_u32 vcc, 0, v%d" % tB)
    p("s_mov_b32 s%d, 1" % sflag)
    skipblock(p, "s_cbranch_vccz", ["s_mov_b32 s%d, 0" % sflag])
```
